```python
import torch

def _softmax(x, axis=-1):
    return torch.softmax(x, dim=axis)
def _gelu(x):
    return torch.nn.functional.gelu(x, approximate="tanh")
def _silu(x):
    return torch.nn.functional.silu(x)
def _sigmoid(x):
    return torch.sigmoid(x)
def _layernorm(x, axis=-1, eps=1e-5):
    m = x.mean(dim=axis, keepdim=True)
    v = x.var(dim=axis, keepdim=True, unbiased=False)
    return (x - m) / torch.sqrt(v + eps)
def _scatter_add(tgt, idx, src, axis=0):
    return tgt.clone().index_add_(axis, idx, src)
def _segment_sum(src, seg, n):
    out = torch.zeros((n,) + src.shape[1:], dtype=src.dtype)
    return out.index_add_(0, seg, src)
def _pad(x, pw):
    flat = tuple(v for pair in reversed(pw) for v in pair)
    return torch.nn.functional.pad(x, flat)

kernel_name = 'standalone__mha_softmax__near_ridge'

def setup_inputs():

    _w = (lambda a: (lambda t: t.to(torch.bfloat16) if t.is_floating_point() else t)(torch.as_tensor(a)))
    B, H, Sq, Sk, D = 8, 32, 1600, 512, 128
    return {
        "q": _w((lambda *s: torch.randn(*s, dtype=torch.bfloat16) * 0.8)(B, H, Sq, D)),
        "k": _w((lambda *s: torch.randn(*s, dtype=torch.bfloat16) * 0.8)(B, H, Sk, D)),
        "v": _w((lambda *s: torch.randn(*s, dtype=torch.bfloat16) * 0.05)(B, H, Sk, D)),
    }

def reference(q, k, v):
    scale = q.shape[-1] ** -0.5
    scores = torch.einsum("bhqd,bhkd->bhqk", q, k) * scale
    p = _softmax(scores, axis=-1)
    return torch.einsum("bhqk,bhkd->bhqd", p, v)
```

```python
import re
TRANS = ('v_exp_f32', 'v_rcp_f32', 'v_log_f32', 'v_rsq_f32', 'v_sqrt_f32')

def regs(op):
    op = op.strip()
    m = re.fullmatch(r'-?([va])\[(\d+):(\d+)\]', op)
    if m: return [(m.group(1), i) for i in range(int(m.group(2)), int(m.group(3)) + 1)]
    m = re.fullmatch(r'-?([va])(\d+)', op)
    if m: return [(m.group(1), int(m.group(2)))]
    return []

class I:
    def __init__(s, text, needs=(), tag=None):
        s.text = text.strip(); s.needs = list(needs); s.tag = tag
        t = s.text.split(';')[0].strip()
        s.label = t.endswith(':') or t.startswith('.') or not t
        if s.label:
            s.kind = 'label'; s.rd = set(); s.wr = set(); s.rdc = set(); return
        parts = t.split(None, 1)
        mn = parts[0]; s.mn = mn
        ops = [o.strip() for o in parts[1].split(',')] if len(parts) > 1 else []
        ops = [o.split()[0] if o else o for o in ops]
        R = [regs(o) for o in ops]
        s.rdc = set(); s.rd = set(); s.wr = set(); s.data = set()
        if mn.startswith('v_mfma'):
            s.kind = 'mfma'; s.wr = set(R[0]); s.rd = set(R[1] + R[2]); s.rdc = set(R[3])
            s.passes = 4 if '16x16x32' in mn else 8
        elif mn.startswith('ds_read') or mn.startswith('ds_bpermute') or mn.startswith('ds_swizzle'):
            s.kind = 'ldsr'; s.wr = set(R[0]); s.rd = set(sum(R[1:], []))
        elif mn.startswith('ds_write'):
            s.kind = 'ldsw'; s.rd = set(sum(R, []))
        elif mn.startswith('buffer_load'):
            if t.endswith(' lds'):
                s.kind = 'dma'; s.rd = set(R[0])
            else:
                s.kind = 'vld'; s.wr = set(R[0]); s.rd = set(R[1])
        elif mn.startswith('buffer_store'):
            s.kind = 'vst'; s.rd = set(R[0] + R[1]); s.data = set(R[0])
        elif mn.startswith('v_'):
            s.kind = 'trans' if mn.replace('_e32', '').replace('_e64', '') in TRANS else 'valu'
            if mn.startswith('v_cmp') or mn.startswith('v_readfirstlane') or mn.startswith('v_readlane'):
                s.rd = set(sum(R[1:], []))
            elif mn.startswith('v_permlane') or mn.startswith('v_swap'):
                s.wr = set(R[0] + R[1]); s.rd = set(R[0] + R[1])
            else:
                s.wr = set(R[0]); s.rd = set(sum(R[1:], []))
                if 'fmac' in mn: s.rd |= s.wr
        elif mn == 's_waitcnt': s.kind = 'wait'
        elif mn == 's_barrier': s.kind = 'bar'
        elif mn == 's_nop': s.kind = 'nop'; s.n = int(ops[0]) + 1
        else:
            s.kind = 'salu'; s.wm0 = bool(ops) and ops[0] == 'm0'
    def __repr__(s): return s.text

def is_lds(i): return i.kind in ('ldsr', 'ldsw')
def is_vm(i): return i.kind in ('dma', 'vld', 'vst')

def parse_wait(text):
    vm = re.search(r'vmcnt\((\d+)\)', text); lg = re.search(r'lgkmcnt\((\d+)\)', text)
    return (int(vm.group(1)) if vm else None, int(lg.group(1)) if lg else None)
def mk_wait(vm, lg):
    return I('s_waitcnt ' + ' '.join(([f'vmcnt({vm})'] if vm is not None else []) + ([f'lgkmcnt({lg})'] if lg is not None else [])))

def insert_waits(seq):
    out = []
    lq = []; vq = []
    pend = {}
    def retire(q, n):
        while len(q) > n:
            op = q.pop(0)
            for r in op.wr:
                if pend.get(r) is op: del pend[r]
    for ins in seq:
        if ins.kind == 'wait':
            vm, lg = parse_wait(ins.text)
            if vm is not None: retire(vq, vm)
            if lg is not None: retire(lq, lg)
            out.append(ins); continue
        need = [pend[r] for r in (ins.rd | ins.rdc | ins.wr) if r in pend]
        need += [n for n in ins.needs if n in lq or n in vq]
        if need:
            pos = len(out)
            j = len(out) - 1
            while j >= 0 and out[j].kind not in ('mfma', 'label', 'bar') and not (out[j].kind == 'salu' and out[j].mn.startswith(('s_cbranch', 's_branch'))): j -= 1
            if j >= 0 and out[j].kind == 'mfma' and not any(n in out[j + 1:] for n in need):
                pos = j + 1
            later = out[pos:]
            def cnt(q):
                ns = [n for n in need if n in q]
                if not ns: return None
                last = max(q.index(n) for n in ns)
                return sum(1 for o in q[last + 1:] if o not in later), sum(1 for o in q[last + 1:])
            cv = cnt(vq); cl = cnt(lq)
            vm = min(cv[0], 63) if cv else None; lg = min(cl[0], 15) if cl else None
            if pos < len(out) and out[pos].kind == 'wait':
                ovm, olg = parse_wait(out[pos].text)
                if ovm is not None: vm = ovm if vm is None else min(vm, ovm)
                if olg is not None: lg = olg if lg is None else min(lg, olg)
                out[pos] = mk_wait(vm, lg)
            else:
                out.insert(pos, mk_wait(vm, lg))
            if cv: retire(vq, cv[1])
            if cl: retire(lq, cl[1])
        out.append(ins)
        if is_lds(ins): lq.append(ins)
        if is_vm(ins): vq.append(ins)
        if ins.kind in ('ldsr', 'vld'):
            for r in ins.wr: pend[r] = ins
    return out

def pad_hazards(seq, report=None):
    out = []
    for ins in seq:
        if ins.kind in ('label',):
            out.append(ins); continue
        need = 0; dist = 0; why = None
        for p in reversed(out):
            if dist >= 20: break
            if p.kind == 'label': continue
            req = 0
            valu = ins.kind in ('valu', 'trans')
            if p.kind == 'mfma':
                big = {4: 8, 8: 12}[p.passes]
                if valu and (p.wr & (ins.rd | ins.wr)): req = big
                if ins.kind in ('ldsw', 'vst', 'ldsr', 'vld', 'dma') and (p.wr & (ins.rd | ins.wr)): req = big
                if ins.kind == 'mfma':
                    if p.wr & ins.rd: req = big
                    if (p.wr & ins.rdc) and (p.wr != ins.rdc or p.passes != ins.passes): req = max(req, big - 2)
                if valu and (p.rdc & ins.wr): req = max(req, {4: 3, 8: 7}[p.passes])
            if p.kind in ('valu', 'trans'):
                if ins.kind == 'mfma' and (p.wr & (ins.rd | ins.rdc)): req = 2
                if p.kind == 'trans' and ins.kind == 'valu' and (p.wr & ins.rd): req = max(req, 1)
                if valu and ins.mn.startswith(('v_readfirstlane', 'v_readlane')) and (p.wr & ins.rd): req = max(req, 1)
                if valu and ins.mn.startswith('v_permlane') and (p.wr & ins.rd): req = max(req, 2)
                if valu and 'dpp' in ins.text.lower().replace('row_', 'dpp') and (p.wr & ins.rd): req = max(req, 2)
            if p.kind == 'vst' and len(p.data) >= 3 and (p.data & ins.wr): req = max(req, 2)
            if p.kind == 'salu' and p.wm0 and ins.kind == 'dma': req = max(req, 1)
            if req - dist > need: need = req - dist; why = p
            dist += p.n if p.kind == 'nop' else 1
        if need > 0:
            if report is not None: report.append((need, why.text, ins.text))
            out.append(I(f's_nop {need - 1}'))
        out.append(ins)
    return out

COST = {'mfma': 8, 'valu': 4, 'trans': 8, 'ldsr': 4, 'dma': 8, 'vld': 8, 'vst': 21, 'salu': 4, 'wait': 4, 'bar': 8, 'label': 0}
def cost(i):
    if i.kind == 'ldsw': return 4 * len(i.rd)
    if i.kind == 'nop': return 4 * i.n
    return COST[i.kind]
def estimate(seq):
    tot = 0; cur = None; first = False; prev = None
    for ins in seq:
        if ins.kind == 'label': continue
        if ins.kind == 'mfma':
            if cur is not None: tot += max(cur[0], cur[1])
            cur = [8, 4 * ins.passes]; first = True
        else:
            c = cost(ins)
            if first and ins.kind in ('salu', 'wait', 'nop'): c -= 4
            if ins.kind in ('ldsr', 'ldsw', 'dma', 'vld', 'vst') and prev is not None and prev.kind in ('valu', 'trans'): c += 8
            first = False
            if cur is None: tot += c
            else: cur[0] += c
        prev = ins
    if cur is not None: tot += max(cur[0], cur[1])
    return tot
```

```python
import sys, struct, math
from asmlib import *

NT = 50
KNAME = "standalone__mha_softmax__near_ridge_kernel"
vQ, vO, vPw, vQr, vLw, vLr, vMin, vMax = 1, 2, 3, 7, 8, 9, 10, 11
vPr = {1: 4, 2: 5, 3: 6}
vR = 12
vT = 14
vSEL = 16
vL = 24
vLd = 28
vSt = 36
vS = 48
vPo = 64
vPm = 96
vQf = 128
vOa = 160
sQ, sK, sV, sO = 12, 16, 20, 24
sW, sCnt, sQo, sOo, sQm = 28, 29, 30, 31, 32
LDS_P, LDS_L, LDS_Q = 0, 65536, 131072
LDS_SIZE = 163840

def vr(b, n=4): return f"v[{b}:{b+n-1}]"
def ar(b, n=4): return f"a[{b}:{b+n-1}]"
def aK(kb, ks): return ar(16 * kb + 4 * ks)
def aV(db, rel, c): return ar(128 + 64 * db + 16 * rel + 4 * c)
def mfma(d, a, b, c): return I(f"v_mfma_f32_16x16x32_bf16 {d}, {a}, {b}, {c}")
def f32(x): return "0x%08x" % struct.unpack('<I', struct.pack('<f', x))[0]

NG = 136
class Sched:
    def __init__(s, nsteps):
        n = (nsteps + 1) * NG
        s.mf = [None] * n; s.sc = [[] for _ in range(n)]; s.mem = [[] for _ in range(n)]; s.va = [[] for _ in range(n)]
    def put(s, g, ins):
        if isinstance(ins, str): ins = I(ins)
        if ins.kind in ('salu',): s.sc[g].append(ins)
        elif ins.kind in ('valu', 'trans'): s.va[g].append(ins)
        else: s.mem[g].append(ins)
        return ins

def build_steps(steps, real):
    S = Sched(len(steps))
    dma = {}
    for i, s in enumerate(steps):
        B = i * NG
        t = s
        par = s & 1
        if real(t):
            for u in range(8):
                c, qh = u >> 1, u & 1
                G = B + 17 * u
                sb = vS + 8 * (u & 1)
                for h in range(2):
                    for ks in range(4):
                        d = vr(sb + 4 * h)
                        S.mf[G + 4 * h + ks] = mfma(d, aK(2 * c + h, ks), vr(vQf + 16 * qh + 4 * ks), d if ks else "0")
                for e in range(8):
                    S.put(G + 8 + 2 * e, f"v_exp_f32 v{sb+e}, v{sb+e}")
                p = vPo + 4 * u
                for j, gg in enumerate((13, 15, 19, 23)):
                    S.put(G + gg, f"v_cvt_pk_bf16_f32 v{p+j}, v{sb+2*j}, v{sb+2*j+1}")
                S.put(G + 24, f"ds_write_b128 v{vPw}, {vr(p)} offset:{LDS_P + par * 32768 + u * 1024}")
                S.mf[G + 33] = mfma(vr(vL), vr(vSEL + 4 * qh), vr(p), vr(vL) if u else "0")
            S.put(B + NG + 26, f"ds_write_b64 v{vLw}, {vr(vL, 2)} offset:{par * 2048}")
        if real(t + 1):
            q = (t + 1) & 1
            for f, gg in enumerate((115, 117, 121, 125, 132, 134, NG + 2, NG + 6)):
                S.put(B + gg, f"ds_read_b128 {vr(vQf + 4 * f)}, v{vQr} offset:{q * 8192 + f * 1024}")
        if par == 1 and real(t + 1):
            S.put(B + 13, f"v_xor_b32 v{vQr}, 0x4000, v{vQr}")
        bar = I("s_barrier", tag=('bar', s))
        S.put(B + 17, bar)
        bar.needs_all_lds = True
        bar.needs = list(dma.get(i + 1, []))
        tp = t - 1
        if real(tp):
            pp = tp & 1
            rg = {2: (19, 21, 21, 23), 3: (30, 32, 36, 40), 4: (47, 49, 53, 57), 5: (64, 66, 70, 74), 6: (81, 83, 87, 91), 7: (98, 100, 104, 108)}
            for u in range(8):
                rel, qh = u >> 1, u & 1
                G = B + 17 * u
                for db in range(2):
                    o = vr(vOa + 16 * pp + 8 * qh + 4 * db)
                    for c in range(4):
                        b = vr(vPo + 4 * (2 * c + qh)) if rel == 0 else vr(vPm + 16 * qh + 4 * c)
                        S.mf[G + 8 + 4 * db + c] = mfma(o, aV(db, rel, c), b, o if (rel or c) else "0")
                if rel:
                    for c in range(4):
                        S.put(B + rg[u][c], f"ds_read_b128 {vr(vPm + 16 * qh + 4 * c)}, v{vPr[rel]} offset:{LDS_P + pp * 32768 + (2 * c + qh) * 1024}")
        if t <= NT - 1:
            S.put(B + 33, f"s_add_u32 m0, s{sQm}, {par * 8192}")
            d0 = S.put(B + 34, f"buffer_load_dwordx4 v{vQ}, s[{sQ}:{sQ+3}], s{sQo} offen lds")
            S.put(B + 37, f"s_add_u32 m0, s{sQm}, {par * 8192 + 1024 - 64}")
            d1 = S.put(B + 38, f"buffer_load_dwordx4 v{vQ}, s[{sQ}:{sQ+3}], s{sQo} offen offset:64 lds")
            S.put(B + 39, f"s_add_u32 s{sQo}, s{sQo}, 8192")
            if par == 1: S.put(B + 40, f"s_xor_b32 s{sQm}, s{sQm}, 0x4000")
            dma[i + 4] = [d0, d1]
        te = t - 2
        if te < 0:
            S.put(B + 94, f"buffer_load_dword v{44 + 2 * t}, v{vQ}, s[{sQ}:{sQ+3}], 0 offen")
            S.put(B + 123, f"buffer_load_dword v{45 + 2 * t}, v{vQ}, s[{sQ}:{sQ+3}], 0 offen")
        if real(te):
            pe = te & 1
            S.put(B + 28, f"ds_read_b128 {vr(vLd)}, v{vLr} offset:{pe * 2048}")
            S.put(B + 28, f"ds_read_b128 {vr(vLd + 4)}, v{vLr} offset:{pe * 2048 + 1024}")
            S.put(B + 43, f"v_add_f32 v{vLd}, v{vLd}, v{vLd+2}")
            S.put(B + 43, f"v_add_f32 v{vLd+1}, v{vLd+1}, v{vLd+3}")
            S.put(B + 45, f"v_add_f32 v{vLd+4}, v{vLd+4}, v{vLd+6}")
            S.put(B + 45, f"v_add_f32 v{vLd+5}, v{vLd+5}, v{vLd+7}")
            S.put(B + 51, f"v_add_f32 v{vLd}, v{vLd}, v{vLd+4}")
            S.put(B + 51, f"v_add_f32 v{vLd+1}, v{vLd+1}, v{vLd+5}")
            S.put(B + 55, f"v_rcp_f32 v{vR}, v{vLd}")
            S.put(B + 60, f"v_rcp_f32 v{vR+1}, v{vLd+1}")
            S.put(B + 62, f"v_min3_f32 v{vMin}, v{vMin}, v{vLd}, v{vLd+1}")
            S.put(B + 62, f"v_max3_f32 v{vMax}, v{vMax}, v{vLd}, v{vLd+1}")
            for qh, (gm, gc, gs) in enumerate((((68, 72, 77, 79), (85, 89), 94), ((96, 102, 106, 111), (113, 119), 123))):
                o = vOa + 16 * pe + 8 * qh
                for j in range(8):
                    S.put(B + gm[j >> 1], f"v_mul_f32 v{o+j}, v{o+j}, v{vR+qh}")
                for j in range(4):
                    S.put(B + gc[j >> 1], f"v_cvt_pk_bf16_f32 v{vSt+4*qh+j}, v{o+2*j}, v{o+2*j+1}")
                S.put(B + gs, f"buffer_store_dwordx4 {vr(vSt + 4 * qh)}, v{vO}, s[{sO}:{sO+3}], s{sOo} offen")
                S.put(B + gs + 1, f"s_add_u32 s{sOo}, s{sOo}, 4096")
    return S

def linear(S, n, marks):
    seq = []
    for g in range(n):
        if S.mf[g] is not None: seq.append(S.mf[g])
        if g in marks: seq += marks[g]
        seq += S.sc[g] + S.mem[g] + S.va[g]
    return seq

def prologue():
    P = []
    def a(t, **k):
        for line in t.strip().split('\n'):
            if line.strip(): P.append(I(line, **k))
        return P[-1]
    a(f"""
    s_cmp_ge_u32 s2, 256
    s_cbranch_scc1 L_end
    s_load_dwordx4 s[4:7], s[0:1], 0
    s_load_dwordx4 s[8:11], s[0:1], 16
    v_lshrrev_b32 v14, 6, v0
    v_and_b32 v15, 63, v0                 ; lane
    v_readfirstlane_b32 s{sW}, v14
    v_and_b32 v44, 15, v0                 ; m
    v_bfe_u32 v45, v0, 4, 2               ; g
    v_lshlrev_b32 v46, 4, v15             ; lane*16
    s_mul_i32 s34, s2, 409600
    s_lshl_b32 s35, s2, 17
    s_waitcnt lgkmcnt(0)
    s_add_u32 s{sQ}, s4, s34
    s_addc_u32 s{sQ+1}, s5, 0
    s_mov_b32 s{sQ+2}, 409600
    s_mov_b32 s{sQ+3}, 0x00020000
    s_add_u32 s{sK}, s6, s35
    s_addc_u32 s{sK+1}, s7, 0
    s_mov_b32 s{sK+2}, 131072
    s_mov_b32 s{sK+3}, 0x00020000
    s_add_u32 s{sV}, s8, s35
    s_addc_u32 s{sV+1}, s9, 0
    s_mov_b32 s{sV+2}, 131072
    s_mov_b32 s{sV+3}, 0x00020000
    s_add_u32 s{sO}, s10, s34
    s_addc_u32 s{sO+1}, s11, 0
    s_mov_b32 s{sO+2}, 409600
    s_mov_b32 s{sO+3}, 0x00020000
    """)
    a(f"""
    v_lshrrev_b32 v47, 2, v44
    v_lshlrev_b32 v47, 11, v47
    v_and_b32 v48, 3, v44
    v_lshl_add_u32 v47, v48, 8, v47
    v_lshl_add_u32 v47, v45, 4, v47
    v_lshl_add_u32 v47, v14, 15, v47
    s_mov_b32 s36, 8192
    s_mov_b32 s37, 16384
    s_mov_b32 s38, 24576
    """)
    kl = []
    for kb in range(8):
        for ks in range(4):
            so = ("0", "s36", "s37", "s38")[kb >> 1]
            r = 128 + 16 * kb + 4 * ks
            kl.append(a(f"buffer_load_dwordx4 {vr(r)}, v47, s[{sK}:{sK+3}], {so} offen offset:{1024 * (kb & 1) + 64 * ks}"))
    a(f"""
    v_lshrrev_b32 v48, 1, v14
    v_lshlrev_b32 v{vQ}, 12, v48
    v_lshl_add_u32 v{vQ}, v44, 8, v{vQ}
    v_and_b32 v49, 1, v14
    v_lshl_add_u32 v{vQ}, v49, 7, v{vQ}
    v_lshl_add_u32 v{vQ}, v45, 4, v{vQ}
    s_lshl_b32 s{sQm}, s{sW}, 11
    s_add_u32 s{sQm}, s{sQm}, {LDS_Q}
    s_mov_b32 s{sQo}, 0
    """)
    qd = []
    for t in range(4):
        a(f"s_add_u32 m0, s{sQm}, {t * 8192}")
        qd.append(a(f"buffer_load_dwordx4 v{vQ}, s[{sQ}:{sQ+3}], s{sQo} offen lds"))
        a(f"s_add_u32 m0, s{sQm}, {t * 8192 + 1024 - 64}")
        qd.append(a(f"buffer_load_dwordx4 v{vQ}, s[{sQ}:{sQ+3}], s{sQo} offen offset:64 lds"))
        a(f"s_add_u32 s{sQo}, s{sQo}, 8192")
    a(f"""
    v_lshrrev_b32 v50, 2, v15
    v_lshlrev_b32 v50, 8, v50
    v_lshl_add_u32 v50, v14, 6, v50
    v_and_b32 v51, 3, v15
    v_lshl_add_u32 v50, v51, 4, v50
    s_lshl_b32 s39, s{sW}, 15
    s_mov_b32 s40, s39
    """)
    vd = []
    for j in range(32):
        a(f"s_add_u32 m0, s39, {j * 1024}")
        vd.append(a(f"buffer_load_dwordx4 v50, s[{sV}:{sV+3}], s40 offen lds"))
        a(f"s_add_u32 s40, s40, 4096")
        if j % 8 == 7: a("s_and_b32 s40, s40, 0x1ffff")
    a(f"""
    v_lshlrev_b32 v{vO}, 8, v44
    v_lshl_add_u32 v{vO}, v14, 6, v{vO}
    v_lshl_add_u32 v{vO}, v45, 4, v{vO}
    v_lshl_add_u32 v{vPw}, v14, 13, v46
    v_add_u32 v{vPr[1]}, 0x2000, v{vPw}
    v_and_b32 v{vPr[1]}, 0x7fff, v{vPr[1]}
    v_add_u32 v{vPr[2]}, 0x4000, v{vPw}
    v_and_b32 v{vPr[2]}, 0x7fff, v{vPr[2]}
    v_add_u32 v{vPr[3]}, 0x6000, v{vPw}
    v_and_b32 v{vPr[3]}, 0x7fff, v{vPr[3]}
    v_add_u32 v{vQr}, {LDS_Q}, v46
    v_add_u32 v{vLr}, {LDS_L}, v46
    v_lshl_add_u32 v{vLw}, v48, 10, v{vLr}
    v_lshl_add_u32 v{vLw}, v49, 3, v{vLw}
    v_mov_b32 v{vMin}, 1.0
    v_mov_b32 v{vMax}, 1.0
    s_mov_b32 s{sOo}, 0
    v_and_b32 v52, 3, v44
    v_mov_b32 v53, 0x3f803f80
    v_cmp_eq_u32 vcc, 0, v52
    s_nop 1
    v_cndmask_b32 v{vSEL}, 0, v53, vcc
    v_cmp_eq_u32 vcc, 1, v52
    s_nop 1
    v_cndmask_b32 v{vSEL+4}, 0, v53, vcc
    v_mov_b32 v{vSEL+1}, v{vSEL}
    v_mov_b32 v{vSEL+2}, v{vSEL}
    v_mov_b32 v{vSEL+3}, v{vSEL}
    v_mov_b32 v{vSEL+5}, v{vSEL+4}
    v_mov_b32 v{vSEL+6}, v{vSEL+4}
    v_mov_b32 v{vSEL+7}, v{vSEL+4}
    s_mov_b32 s33, {f32(math.log2(math.e) / math.sqrt(128.0))}
    """)
    a(f"""
    v_lshlrev_b32 v54, 15, v14
    v_lshl_add_u32 v54, v45, 9, v54
    v_bfe_u32 v55, v0, 2, 2
    v_lshl_add_u32 v54, v55, 6, v54
    v_lshl_add_u32 v54, v51, 4, v54
    """)
    for r in range(128):
        x = 128 + r; t0 = 56 + 2 * (r & 3)
        a(f"""
        v_lshlrev_b32 v{t0}, 16, v{x}
        v_and_b32 v{t0+1}, 0xffff0000, v{x}
        v_mul_f32 v{t0}, s33, v{t0}
        v_mul_f32 v{t0+1}, s33, v{t0+1}
        v_cvt_pk_bf16_f32 v{x}, v{t0}, v{t0+1}
        v_accvgpr_write_b32 a{r}, v{x}
        """)
    for rel in range(4):
        for c in range(4):
            for db in range(2):
                for hh in range(2):
                    base = 128 + 64 * db + 16 * rel + 4 * c + 2 * hh
                    need = vd[8 * rel + 2 * c: 8 * rel + 2 * c + 2]
                    a(f"ds_read_b64_tr_b16 a[{base}:{base+1}], v54 offset:{rel * 8192 + c * 2048 + hh * 256 + db * 8}", needs=need)
    a("s_waitcnt vmcnt(0) lgkmcnt(0)")
    a("s_barrier")
    for f in range(8):
        a(f"ds_read_b128 {vr(vQf + 4 * f)}, v{vQr} offset:{f * 1024}")
    return P

def main(out):
    real = lambda t: 0 <= t < NT
    steps = [0, 1, 2, 3, 4, 5, 6, 7, 8, 9, 48, 49, 50, 51]
    S = build_steps(steps, real)
    marks = {}
    for i in range(2, len(steps) - 1, 2):
        marks[i * NG] = [I(f"; CUT {i}")]
    for i in range(3, len(steps) - 2, 2):
        S.put(i * NG + 130, f"s_sub_u32 s{sCnt}, s{sCnt}, 1")
        S.put(i * NG + 135, f"s_cmp_lg_u32 s{sCnt}, 0")
    body = linear(S, len(steps) * NG, marks)
    seen = []
    for ins in body:
        if is_lds(ins): seen.append(ins)
        if ins.kind == 'bar': ins.needs = ins.needs + seen[-1:]
    pro = prologue()
    rep = []
    seq = pad_hazards(insert_waits(pro + body), rep)
    for r in rep:
        if "m0" not in r[1]: print("hazard pad:", r, file=sys.stderr)
    cuts = [k for k, x in enumerate(seq) if x.text.startswith('; CUT')]
    segs = [seq[:cuts[0]]] + [seq[cuts[j] + 1:cuts[j + 1]] for j in range(len(cuts) - 1)] + [seq[cuts[-1] + 1:]]
    txt = lambda sg: [x.text for x in sg]
    loop = segs[3]
    for j in (1, 2, 4):
        if txt(segs[j]) != txt(loop):
            d = [(a, b) for a, b in zip(txt(segs[j]), txt(loop)) if a != b]
            print(f"seg {j} differs from loop: len {len(segs[j])} vs {len(loop)}; first diffs {d[:6]}", file=sys.stderr)
    print("est cycles loop (2 steps):", estimate(loop), " head:", estimate(segs[0]), " last:", estimate(segs[5]), " tail:", estimate(segs[6]), file=sys.stderr)
    L = []
    L.append(open('standalone__mha_softmax__near_ridge.s.ref').read().split('; Override')[0].rstrip())
    L.append(f"; @launch grid=(256,1,1) block=(256,1,1) lds={LDS_SIZE}")
    L.append(f'.amdgcn_target "amdgcn-amd-amdhsa--gfx950"\n.text\n.globl {KNAME}\n.p2align 8\n.type {KNAME},@function\n{KNAME}:')
    emit = lambda sg: L.extend(("    " + x.text) if not x.label else x.text for x in sg)
    L.append(f"    s_mov_b32 s{sCnt}, 23")
    emit(segs[0])
    L.append(".p2align 6\nL_loop:")
    emit(loop)
    L.append("    s_cbranch_scc1 L_loop")
    emit(segs[5]); emit(segs[6])
    L.append("L_end:\n    s_endpgm")
    L.append(f""".section .rodata,"a"
.p2align 6
.amdhsa_kernel {KNAME}
  .amdhsa_next_free_vgpr 512
  .amdhsa_next_free_sgpr 64
  .amdhsa_accum_offset 256
  .amdhsa_group_segment_fixed_size 0
  .amdhsa_kernarg_size 48
  .amdhsa_user_sgpr_count 2
  .amdhsa_user_sgpr_kernarg_segment_ptr 1
  .amdhsa_system_sgpr_workgroup_id_x 1
.end_amdhsa_kernel""")
    open(out, 'w').write("\n".join(L) + "\n")

if __name__ == "__main__":
    main(sys.argv[1] if len(sys.argv) > 1 else 'standalone__mha_softmax__near_ridge.s')
```

```python
import sys, struct, math
from asmlib import *

NT = 50
KNAME = "standalone__mha_softmax__near_ridge_kernel"
vQ, vO, vPw, vQr, vLw, vLr, vMin, vMax = 1, 2, 3, 7, 8, 9, 10, 11
vPr = {1: 4, 2: 5, 3: 6}
vR = 12
vT = 14
vSEL = 16
vL = 24
vLd = 28
vSt = 36
vS = 48
vPo = 64
vPm = 96
vQf = 128
vOa = 160
sQ, sK, sV, sO = 12, 16, 20, 24
sW, sCnt, sQo, sOo, sQm = 28, 29, 30, 31, 32
LDS_P, LDS_L, LDS_Q = 0, 65536, 131072
LDS_SIZE = 163840

def vr(b, n=4): return f"v[{b}:{b+n-1}]"
def ar(b, n=4): return f"a[{b}:{b+n-1}]"
def aK(kb, ks): return ar(16 * kb + 4 * ks)
def aV(db, rel, c): return ar(128 + 64 * db + 16 * rel + 4 * c)
def mfma(d, a, b, c): return I(f"v_mfma_f32_16x16x32_bf16 {d}, {a}, {b}, {c}")
def f32(x): return "0x%08x" % struct.unpack('<I', struct.pack('<f', x))[0]

NG = 136
import os
STAMP = int(os.environ.get("STAMP", "0"))
LDF = os.environ.get("LDF", " nt")
STF = os.environ.get("STF", " nt")
_nst = [0]
def stamp():
    if not STAMP: return []
    i = _nst[0]; _nst[0] += 1
    return [I(f"s_memtime s[{64+4*i}:{65+4*i}]"), I(f"s_memrealtime s[{66+4*i}:{67+4*i}]"), I("s_waitcnt lgkmcnt(0)")]
def stamp_out():
    if not STAMP: return []
    t = ["s_load_dwordx2 s[44:45], s[0:1], 40", "s_waitcnt lgkmcnt(0)", "s_mov_b32 s46, 0x100000", "s_mov_b32 s47, 0x00020000",
         "s_lshl_b32 s48, s2, 2", f"s_add_u32 s48, s48, s{sW}", "s_lshl_b32 s48, s48, 7", "v_mov_b32 v44, 0"]
    for i in range(_nst[0]):
        t += [f"v_mov_b32 v46, s{64+4*i}", f"v_mov_b32 v47, s{66+4*i}", f"buffer_store_dwordx2 v[46:47], v44, s[44:47], s48 offen offset:{8*i}", "s_nop 1"]
    return [I(x) for x in t]
class Sched:
    def __init__(s, nsteps):
        n = (nsteps + 1) * NG
        s.mf = [None] * n; s.sc = [[] for _ in range(n)]; s.mem = [[] for _ in range(n)]; s.va = [[] for _ in range(n)]
    def put(s, g, ins):
        if isinstance(ins, str): ins = I(ins)
        if ins.kind in ('salu',): s.sc[g].append(ins)
        elif ins.kind in ('valu', 'trans'): s.va[g].append(ins)
        else: s.mem[g].append(ins)
        return ins

def build_steps(steps, real):
    S = Sched(len(steps))
    dma = {}
    for i, s in enumerate(steps):
        B = i * NG
        t = s
        par = s & 1
        if real(t):
            for u in range(8):
                c, qh = u >> 1, u & 1
                G = B + 17 * u
                sb = vS + 8 * (u & 1)
                for h in range(2):
                    for ks in range(4):
                        d = vr(sb + 4 * h)
                        S.mf[G + 4 * h + ks] = mfma(d, aK(2 * c + h, ks), vr(vQf + 16 * qh + 4 * ks), d if ks else "0")
                for e in range(8):
                    S.put(G + 8 + 2 * e, f"v_exp_f32 v{sb+e}, v{sb+e}")
                p = vPo + 4 * u
                for j, gg in enumerate((13, 15, 19, 23)):
                    S.put(G + gg, f"v_cvt_pk_bf16_f32 v{p+j}, v{sb+2*j}, v{sb+2*j+1}")
                S.put(G + 24, f"ds_write_b128 v{vPw}, {vr(p)} offset:{LDS_P + par * 32768 + u * 1024}")
                S.mf[G + 33] = mfma(vr(vL), vr(vSEL + 4 * qh), vr(p), vr(vL) if u else "0")
            S.put(B + NG + 26, f"ds_write_b64 v{vLw}, {vr(vL, 2)} offset:{par * 2048}")
        if real(t + 1):
            q = (t + 1) & 1
            for f, gg in enumerate((115, 117, 121, 125, 132, 134, NG + 2, NG + 6)):
                S.put(B + gg, f"ds_read_b128 {vr(vQf + 4 * f)}, v{vQr} offset:{q * 8192 + f * 1024}")
        if par == 1 and real(t + 1):
            S.put(B + 13, f"v_xor_b32 v{vQr}, 0x4000, v{vQr}")
        bar = I("s_barrier", tag=('bar', s))
        S.put(B + 17, bar)
        bar.needs_all_lds = True
        bar.needs = list(dma.get(i + 1, []))
        tp = t - 1
        if real(tp):
            pp = tp & 1
            rg = {2: (19, 21, 21, 23), 3: (30, 32, 36, 40), 4: (47, 49, 53, 57), 5: (64, 66, 70, 74), 6: (81, 83, 87, 91), 7: (98, 100, 104, 108)}
            for u in range(8):
                rel, qh = u >> 1, u & 1
                G = B + 17 * u
                for db in range(2):
                    o = vr(vOa + 16 * pp + 8 * qh + 4 * db)
                    for c in range(4):
                        b = vr(vPo + 4 * (2 * c + qh)) if rel == 0 else vr(vPm + 16 * qh + 4 * c)
                        S.mf[G + 8 + 4 * db + c] = mfma(o, aV(db, rel, c), b, o if (rel or c) else "0")
                if rel:
                    for c in range(4):
                        S.put(B + rg[u][c], f"ds_read_b128 {vr(vPm + 16 * qh + 4 * c)}, v{vPr[rel]} offset:{LDS_P + pp * 32768 + (2 * c + qh) * 1024}")
        if t <= NT - 1:
            S.put(B + 33, f"s_add_u32 m0, s{sQm}, {par * 8192}")
            d0 = S.put(B + 34, f"buffer_load_dwordx4 v{vQ}, s[{sQ}:{sQ+3}], s{sQo} offen{LDF} lds")
            S.put(B + 37, f"s_add_u32 m0, s{sQm}, {par * 8192 + 1024 - 64}")
            d1 = S.put(B + 38, f"buffer_load_dwordx4 v{vQ}, s[{sQ}:{sQ+3}], s{sQo} offen offset:64{LDF} lds")
            S.put(B + 39, f"s_add_u32 s{sQo}, s{sQo}, 8192")
            if par == 1: S.put(B + 40, f"s_xor_b32 s{sQm}, s{sQm}, 0x4000")
            dma[i + 4] = [d0, d1]
        te = t - 2
        if te < 0:
            S.put(B + 94, f"buffer_load_dword v{44 + 2 * t}, v{vQ}, s[{sQ}:{sQ+3}], 0 offen")
            S.put(B + 123, f"buffer_load_dword v{45 + 2 * t}, v{vQ}, s[{sQ}:{sQ+3}], 0 offen")
        if real(te):
            pe = te & 1
            S.put(B + 28, f"ds_read_b128 {vr(vLd)}, v{vLr} offset:{pe * 2048}")
            S.put(B + 28, f"ds_read_b128 {vr(vLd + 4)}, v{vLr} offset:{pe * 2048 + 1024}")
            S.put(B + 43, f"v_add_f32 v{vLd}, v{vLd}, v{vLd+2}")
            S.put(B + 43, f"v_add_f32 v{vLd+1}, v{vLd+1}, v{vLd+3}")
            S.put(B + 45, f"v_add_f32 v{vLd+4}, v{vLd+4}, v{vLd+6}")
            S.put(B + 45, f"v_add_f32 v{vLd+5}, v{vLd+5}, v{vLd+7}")
            S.put(B + 51, f"v_add_f32 v{vLd}, v{vLd}, v{vLd+4}")
            S.put(B + 51, f"v_add_f32 v{vLd+1}, v{vLd+1}, v{vLd+5}")
            S.put(B + 55, f"v_rcp_f32 v{vR}, v{vLd}")
            S.put(B + 60, f"v_rcp_f32 v{vR+1}, v{vLd+1}")
            S.put(B + 62, f"v_min3_f32 v{vMin}, v{vMin}, v{vLd}, v{vLd+1}")
            S.put(B + 62, f"v_max3_f32 v{vMax}, v{vMax}, v{vLd}, v{vLd+1}")
            for qh, (gm, gc, gs) in enumerate((((68, 72, 77, 79), (85, 89), 94), ((96, 102, 106, 111), (113, 119), 123))):
                o = vOa + 16 * pe + 8 * qh
                for j in range(8):
                    S.put(B + gm[j >> 1], f"v_mul_f32 v{o+j}, v{o+j}, v{vR+qh}")
                for j in range(4):
                    S.put(B + gc[j >> 1], f"v_cvt_pk_bf16_f32 v{vSt+4*qh+j}, v{o+2*j}, v{o+2*j+1}")
                S.put(B + gs, f"buffer_store_dwordx4 {vr(vSt + 4 * qh)}, v{vO}, s[{sO}:{sO+3}], s{sOo} offen{STF}")
                S.put(B + gs + 1, f"s_add_u32 s{sOo}, s{sOo}, 4096")
    return S

def linear(S, n, marks):
    seq = []
    for g in range(n):
        if S.mf[g] is not None: seq.append(S.mf[g])
        if g in marks: seq += marks[g]
        seq += S.sc[g] + S.mem[g] + S.va[g]
    return seq

def prologue():
    P = []
    def a(t, **k):
        for line in t.strip().split('\n'):
            if line.strip(): P.append(I(line, **k))
        return P[-1]
    a(f"""
    s_cmp_ge_u32 s2, 256
    s_cbranch_scc1 L_end
    """)
    P.extend(stamp())
    a(f"""
    s_load_dwordx4 s[4:7], s[0:1], 0
    s_load_dwordx4 s[8:11], s[0:1], 16
    v_lshrrev_b32 v14, 6, v0
    v_and_b32 v15, 63, v0                 ; lane
    v_readfirstlane_b32 s{sW}, v14
    v_and_b32 v44, 15, v0                 ; m
    v_bfe_u32 v45, v0, 4, 2               ; g
    v_lshlrev_b32 v46, 4, v15             ; lane*16
    s_mul_i32 s34, s2, 409600
    s_lshl_b32 s35, s2, 17
    s_waitcnt lgkmcnt(0)
    s_add_u32 s{sQ}, s4, s34
    s_addc_u32 s{sQ+1}, s5, 0
    s_mov_b32 s{sQ+2}, 409600
    s_mov_b32 s{sQ+3}, 0x00020000
    s_add_u32 s{sK}, s6, s35
    s_addc_u32 s{sK+1}, s7, 0
    s_mov_b32 s{sK+2}, 131072
    s_mov_b32 s{sK+3}, 0x00020000
    s_add_u32 s{sV}, s8, s35
    s_addc_u32 s{sV+1}, s9, 0
    s_mov_b32 s{sV+2}, 131072
    s_mov_b32 s{sV+3}, 0x00020000
    s_add_u32 s{sO}, s10, s34
    s_addc_u32 s{sO+1}, s11, 0
    s_mov_b32 s{sO+2}, 409600
    s_mov_b32 s{sO+3}, 0x00020000
    """)
    a(f"""
    v_lshrrev_b32 v47, 2, v44
    v_lshlrev_b32 v47, 11, v47
    v_and_b32 v48, 3, v44
    v_lshl_add_u32 v47, v48, 8, v47
    v_lshl_add_u32 v47, v45, 4, v47
    v_lshl_add_u32 v47, v14, 15, v47
    s_mov_b32 s36, 8192
    s_mov_b32 s37, 16384
    s_mov_b32 s38, 24576
    """)
    kl = []
    for kb in range(8):
        for ks in range(4):
            so = ("0", "s36", "s37", "s38")[kb >> 1]
            r = 128 + 16 * kb + 4 * ks
            kl.append(a(f"buffer_load_dwordx4 {vr(r)}, v47, s[{sK}:{sK+3}], {so} offen offset:{1024 * (kb & 1) + 64 * ks}{LDF}"))
    a(f"""
    v_lshrrev_b32 v48, 1, v14
    v_lshlrev_b32 v{vQ}, 12, v48
    v_lshl_add_u32 v{vQ}, v44, 8, v{vQ}
    v_and_b32 v49, 1, v14
    v_lshl_add_u32 v{vQ}, v49, 7, v{vQ}
    v_lshl_add_u32 v{vQ}, v45, 4, v{vQ}
    s_lshl_b32 s{sQm}, s{sW}, 11
    s_add_u32 s{sQm}, s{sQm}, {LDS_Q}
    s_mov_b32 s{sQo}, 0
    """)
    qd = []
    for t in range(4):
        a(f"s_add_u32 m0, s{sQm}, {t * 8192}")
        qd.append(a(f"buffer_load_dwordx4 v{vQ}, s[{sQ}:{sQ+3}], s{sQo} offen{LDF} lds"))
        a(f"s_add_u32 m0, s{sQm}, {t * 8192 + 1024 - 64}")
        qd.append(a(f"buffer_load_dwordx4 v{vQ}, s[{sQ}:{sQ+3}], s{sQo} offen offset:64{LDF} lds"))
        a(f"s_add_u32 s{sQo}, s{sQo}, 8192")
    a(f"""
    v_lshrrev_b32 v50, 2, v15
    v_lshlrev_b32 v50, 8, v50
    v_lshl_add_u32 v50, v14, 6, v50
    v_and_b32 v51, 3, v15
    v_lshl_add_u32 v50, v51, 4, v50
    s_lshl_b32 s39, s{sW}, 15
    s_mov_b32 s40, s39
    """)
    vd = []
    for j in range(32):
        a(f"s_add_u32 m0, s39, {j * 1024}")
        vd.append(a(f"buffer_load_dwordx4 v50, s[{sV}:{sV+3}], s40 offen{LDF} lds"))
        a(f"s_add_u32 s40, s40, 4096")
        if j % 8 == 7: a("s_and_b32 s40, s40, 0x1ffff")
    a(f"""
    v_lshlrev_b32 v{vO}, 8, v44
    v_lshl_add_u32 v{vO}, v14, 6, v{vO}
    v_lshl_add_u32 v{vO}, v45, 4, v{vO}
    v_lshl_add_u32 v{vPw}, v14, 13, v46
    v_add_u32 v{vPr[1]}, 0x2000, v{vPw}
    v_and_b32 v{vPr[1]}, 0x7fff, v{vPr[1]}
    v_add_u32 v{vPr[2]}, 0x4000, v{vPw}
    v_and_b32 v{vPr[2]}, 0x7fff, v{vPr[2]}
    v_add_u32 v{vPr[3]}, 0x6000, v{vPw}
    v_and_b32 v{vPr[3]}, 0x7fff, v{vPr[3]}
    v_add_u32 v{vQr}, {LDS_Q}, v46
    v_add_u32 v{vLr}, {LDS_L}, v46
    v_lshl_add_u32 v{vLw}, v48, 10, v{vLr}
    v_lshl_add_u32 v{vLw}, v49, 3, v{vLw}
    v_mov_b32 v{vMin}, 1.0
    v_mov_b32 v{vMax}, 1.0
    s_mov_b32 s{sOo}, 0
    v_and_b32 v52, 3, v44
    v_mov_b32 v53, 0x3f803f80
    v_cmp_eq_u32 vcc, 0, v52
    s_nop 1
    v_cndmask_b32 v{vSEL}, 0, v53, vcc
    v_cmp_eq_u32 vcc, 1, v52
    s_nop 1
    v_cndmask_b32 v{vSEL+4}, 0, v53, vcc
    v_mov_b32 v{vSEL+1}, v{vSEL}
    v_mov_b32 v{vSEL+2}, v{vSEL}
    v_mov_b32 v{vSEL+3}, v{vSEL}
    v_mov_b32 v{vSEL+5}, v{vSEL+4}
    v_mov_b32 v{vSEL+6}, v{vSEL+4}
    v_mov_b32 v{vSEL+7}, v{vSEL+4}
    s_mov_b32 s33, {f32(math.log2(math.e) / math.sqrt(128.0))}
    """)
    a(f"""
    v_lshlrev_b32 v54, 15, v14
    v_lshl_add_u32 v54, v45, 9, v54
    v_bfe_u32 v55, v0, 2, 2
    v_lshl_add_u32 v54, v55, 6, v54
    v_lshl_add_u32 v54, v51, 4, v54
    """)
    P.extend(stamp())
    for r in range(128):
        x = 128 + r; t0 = 56 + 2 * (r & 3)
        a(f"""
        v_lshlrev_b32 v{t0}, 16, v{x}
        v_and_b32 v{t0+1}, 0xffff0000, v{x}
        v_mul_f32 v{t0}, s33, v{t0}
        v_mul_f32 v{t0+1}, s33, v{t0+1}
        v_cvt_pk_bf16_f32 v{x}, v{t0}, v{t0+1}
        v_accvgpr_write_b32 a{r}, v{x}
        """)
    P.extend(stamp())
    for rel in range(4):
        for c in range(4):
            for db in range(2):
                for hh in range(2):
                    base = 128 + 64 * db + 16 * rel + 4 * c + 2 * hh
                    need = vd[8 * rel + 2 * c: 8 * rel + 2 * c + 2]
                    a(f"ds_read_b64_tr_b16 a[{base}:{base+1}], v54 offset:{rel * 8192 + c * 2048 + hh * 256 + db * 8}", needs=need)
    a("s_waitcnt vmcnt(0) lgkmcnt(0)")
    a("s_barrier")
    P.extend(stamp())
    for f in range(8):
        a(f"ds_read_b128 {vr(vQf + 4 * f)}, v{vQr} offset:{f * 1024}")
    return P

def main(out):
    real = lambda t: 0 <= t < NT
    steps = [0, 1, 2, 3, 4, 5, 6, 7, 8, 9, 48, 49, 50, 51]
    S = build_steps(steps, real)
    marks = {}
    for i in range(2, len(steps) - 1, 2):
        marks[i * NG] = [I(f"; CUT {i}")]
    for i in range(3, len(steps) - 2, 2):
        S.put(i * NG + 130, f"s_sub_u32 s{sCnt}, s{sCnt}, 1")
        S.put(i * NG + 135, f"s_cmp_lg_u32 s{sCnt}, 0")
    body = linear(S, len(steps) * NG, marks)
    seen = []
    for ins in body:
        if is_lds(ins): seen.append(ins)
        if ins.kind == 'bar': ins.needs = ins.needs + seen[-1:]
    pro = prologue()
    rep = []
    seq = pad_hazards(insert_waits(pro + body), rep)
    for r in rep:
        if "m0" not in r[1]: print("hazard pad:", r, file=sys.stderr)
    cuts = [k for k, x in enumerate(seq) if x.text.startswith('; CUT')]
    segs = [seq[:cuts[0]]] + [seq[cuts[j] + 1:cuts[j + 1]] for j in range(len(cuts) - 1)] + [seq[cuts[-1] + 1:]]
    txt = lambda sg: [x.text for x in sg]
    loop = segs[3]
    for j in (1, 2, 4):
        if txt(segs[j]) != txt(loop):
            d = [(a, b) for a, b in zip(txt(segs[j]), txt(loop)) if a != b]
            print(f"seg {j} differs from loop: len {len(segs[j])} vs {len(loop)}; first diffs {d[:6]}", file=sys.stderr)
    print("est cycles loop (2 steps):", estimate(loop), " head:", estimate(segs[0]), " last:", estimate(segs[5]), " tail:", estimate(segs[6]), file=sys.stderr)
    L = []
    L.append(open('standalone__mha_softmax__near_ridge.s.ref').read().split('; Override')[0].rstrip())
    L.append(f"; @launch grid=(256,1,1) block=(256,1,1) lds={LDS_SIZE}")
    L.append(f'.amdgcn_target "amdgcn-amd-amdhsa--gfx950"\n.text\n.globl {KNAME}\n.p2align 8\n.type {KNAME},@function\n{KNAME}:')
    emit = lambda sg: L.extend(("    " + x.text) if not x.label else x.text for x in sg)
    L.append(f"    s_mov_b32 s{sCnt}, 23")
    emit(segs[0])
    emit(stamp())
    L.append(".p2align 6\nL_loop:")
    emit(loop)
    L.append("    s_cbranch_scc1 L_loop")
    emit(stamp())
    emit(segs[5]); emit(segs[6])
    emit(stamp())
    if STAMP: L.append("    s_waitcnt vmcnt(0)")
    emit(stamp())
    emit(stamp_out())
    L.append("L_end:\n    s_endpgm")
    L.append(f""".section .rodata,"a"
.p2align 6
.amdhsa_kernel {KNAME}
  .amdhsa_next_free_vgpr 512
  .amdhsa_next_free_sgpr 102
  .amdhsa_accum_offset 256
  .amdhsa_group_segment_fixed_size 0
  .amdhsa_kernarg_size 48
  .amdhsa_user_sgpr_count 2
  .amdhsa_user_sgpr_kernarg_segment_ptr 1
  .amdhsa_system_sgpr_workgroup_id_x 1
.end_amdhsa_kernel""")
    open(out, 'w').write("\n".join(L) + "\n")

if __name__ == "__main__":
    main(sys.argv[1] if len(sys.argv) > 1 else 'standalone__mha_softmax__near_ridge.s')
```

```python
from gen_mb import *
import os
os.makedirs("mbs4", exist_ok=True)

def mk(shape, afn, bfn, cfn):
    def f(i):
        a = afn(i); b = bfn(i); c = cfn(i)
        A = f"a[{4*a}:{4*a+3}]"
        B = f"v[{40+4*b}:{40+4*b+3}]"
        if shape == 32:
            cc = 8 + 16 * c
            return f"v_mfma_f32_32x32x16_bf16 v[{cc}:{cc+15}], {A}, {B}, v[{cc}:{cc+15}]"
        cc = 8 + 4 * c
        return f"v_mfma_f32_16x16x32_bf16 v[{cc}:{cc+3}], {A}, {B}, v[{cc}:{cc+3}]"
    return f

def stream(mf, n, fillers):
    f = F()
    gaps = [[] for _ in range(n)]
    for kind, cnt in fillers:
        for j in range(cnt):
            gaps[(j * n) // cnt].append(kind)
    out = []
    for i in range(n):
        out.append("    " + mf(i))
        for k in gaps[i]:
            out.append("    " + f.get(k))
    return "\n".join(out)

def dual(name, desc, sA, sB, prioA=0, prioB=0, barrier=True, iters=50):
    bar = "    s_barrier\n" if barrier else ""
    body = f"""    s_cmp_ge_u32 s60, 4
    s_cbranch_scc1 L_B
{sA}
{bar}    s_branch L_J
L_B:
{sB}
{bar}L_J:
"""
    pre = f"""    v_lshrrev_b32 v4, 6, v0
    s_nop 1
    v_readfirstlane_b32 s60, v4
    s_nop 3
    s_cmp_ge_u32 s60, 4
    s_cbranch_scc1 L_pB
    s_setprio {prioA}
    s_branch L_pJ
L_pB:
    s_setprio {prioB}
L_pJ:
""" + "\n".join(f"    v_mov_b32 v{r}, 0" for r in range(8, 40))
    open(f"mbs4/{name}.s", "w").write(kernel(desc, body, 64, iters=iters, block=512, nfv=256, acc=128, pre=pre))

QK16 = mk(16, lambda i: (i // 8) * 4 + i % 4, lambda i: i % 8, lambda i: (i // 4) % 8)
QK32 = mk(32, lambda i: i % 32, lambda i: i % 8, lambda i: (i // 8) % 2)
PV16 = mk(16, lambda i: (i // 16) * 8 + (i % 8), lambda i: (i % 4) + 4 * ((i // 8) % 2), lambda i: (i // 4) % 4)
PV32 = mk(32, lambda i: i % 32, lambda i: i % 8, lambda i: 0)
fQK = [('exp', 64), ('add', 64), ('cvt', 32), ('rd128', 8), ('wr128', 8), ('wait', 8)]
fQKd = [('exp', 64), ('cvt', 32), ('dot2', 32), ('rd128', 8), ('wr128', 8), ('wait', 8)]
fQKn = [('exp', 64), ('cvt', 32), ('rd128', 8), ('wr128', 8), ('wait', 8)]
fPV = [('rd128', 32), ('add', 24), ('cvt', 8), ('wait', 16)]
for pa, pb in ((0, 0), (1, 0), (0, 1)):
    dual(f"k_16_16_p{pa}{pb}", f"QK16 PV16 prio {pa}{pb}", stream(QK16, 64, fQK), stream(PV16, 64, fPV), pa, pb)
    dual(f"k_32_16_p{pa}{pb}", f"QK32 PV16 prio {pa}{pb}", stream(QK32, 32, fQK), stream(PV16, 64, fPV), pa, pb)
    dual(f"k_32_32_p{pa}{pb}", f"QK32 PV32 prio {pa}{pb}", stream(QK32, 32, fQK), stream(PV32, 32, fPV), pa, pb)
    dual(f"k_16_32_p{pa}{pb}", f"QK16 PV32 prio {pa}{pb}", stream(QK16, 64, fQK), stream(PV32, 32, fPV), pa, pb)
dual("l_16_16_dot", "QK16(dot2) PV16 prio 10", stream(QK16, 64, fQKd), stream(PV16, 64, fPV), 1, 0)
dual("l_16_16_nosum", "QK16(nosum) PV16 prio 10", stream(QK16, 64, fQKn), stream(PV16, 64, fPV), 1, 0)
dual("l_16_16_bare", "QK16 PV16 bare", stream(QK16, 64, []), stream(PV16, 64, []), 1, 0)
def mI(i):
    if (i // 8) % 2 == 0:
        return f"v_mfma_f32_32x32x16_bf16 v[{128+16*((i//16)%2)}:{143+16*((i//16)%2)}], a[{4*i}:{4*i+3}], v[{40+4*(i%8)}:{43+4*(i%8)}], v[{128+16*((i//16)%2)}:{143+16*((i//16)%2)}]"
    return f"v_mfma_f32_32x32x16_bf16 v[160:175], a[{4*i}:{4*i+3}], v[{8+4*(i%8)}:{11+4*(i%8)}], v[160:175]"
fI = [('exp', 64), ('add', 64), ('cvt', 32), ('rd128', 32), ('wr128', 8), ('wait', 16), ('add', 24), ('cvt', 8)]
open("mbs4/i_32.s", "w").write(kernel("design I all m32 1 wave", stream(mI, 64, fI) + "\n    s_barrier\n", 64, iters=50))
```

```python
from gen4 import *
os.makedirs("mbs8", exist_ok=True)
COST = {'exp': 8, 'wr128': 20, 'gst': 20, 'gsts': 20}
MEM = ('rd128', 'rdtr', 'wr128', 'dma', 'gld', 'gst', 'dmav', 'dmaq', 'gsts', 'gldq')
SC = ('wait', 'salu', 'vmw')
class F2(F):
    def get(s, k):
        if k == 'dmav':
            return "buffer_load_dwordx4 v1, s[64:67], s70 offen lds\n    s_add_u32 s70, s70, 4096\n    s_and_b32 s70, s70, 0x1ffff"
        if k == 'dmaq':
            return "buffer_load_dwordx4 v1, s[72:75], s71 offen lds\n    s_add_u32 s71, s71, 4096"
        if k == 'gldq':
            return "buffer_load_dwordx4 a[252:255], v1, s[72:75], s71 offen\n    s_add_u32 s71, s71, 4096"
        if k == 'gsts':
            return "buffer_store_dwordx4 v[72:75], v1, s[76:79], s69 offen\n    s_add_u32 s69, s69, 4096"
        if k == 'vmw': return "s_waitcnt vmcnt(8)"
        return F.get(s, k)
def pack(mfs, items, scal):
    n = len(mfs)
    gaps = [[] for _ in range(n)]
    tot_room = sum(r for _, r in mfs)
    tot = sum(COST.get(k, 4) for k in items)
    rem = list(items); done = 0; cum = 0; over = 0
    for i, (_, room) in enumerate(mfs):
        cum += room
        target = tot * cum / tot_room
        used = 0
        while rem:
            pick = None
            for j in range(min(10, len(rem))):
                c = COST.get(rem[j], 4)
                fits = used + c <= room or (used == 0 and c > max(r for _, r in mfs))
                if fits and done + min(c, 8) <= target + 6:
                    pick = j; break
            if pick is None: break
            k = rem.pop(pick); c = COST.get(k, 4); used += c; done += c; gaps[i].append(k)
        over += max(0, used - room)
    for j, k in enumerate(rem):
        gaps[(j * 37 + 5) % n].append(k); over += COST.get(k, 4)
    sc = [[] for _ in range(n)]
    for j, k in enumerate(scal): sc[(j * n) // len(scal)].append(k)
    f = F2(); out = []
    for i in range(n):
        out.append("    " + mfs[i][0])
        g = sc[i] + [k for k in gaps[i] if k in MEM] + [k for k in gaps[i] if k not in MEM]
        for k in g: out.append("    " + f.get(k))
    return "\n".join(out), over
def m16(c, a, b, A=None, B=None):
    A = A or f"a[{4*a}:{4*a+3}]"
    B = B or f"v[{b}:{b+3}]"
    return (f"v_mfma_f32_16x16x32_bf16 v[{c}:{c+3}], {A}, {B}, v[{c}:{c+3}]", 8)
def m32(c, a, b):
    return (f"v_mfma_f32_32x32x16_bf16 v[{c}:{c+15}], a[{4*a}:{4*a+3}], v[{b}:{b+3}], v[{c}:{c+15}]", 24)
def qk16(u): return [m16(128 + 4 * ((2 * u + h) % 8), 4 * (u//2*2 + h) % 32 + ks, 40 + 16 * (u % 2) + 4 * ks) for h in range(2) for ks in range(4)]
def pv16(u): return [m16(160 + 4 * (h + 2 * (u % 2)), 32 + 16 * h + 4 * (u // 2) + ks, 8 + 16 * (u % 2) + 4 * ks) for h in range(2) for ks in range(4)]
def qk32(u): return [m32(128 + 16 * (u % 2), 8 * u + ks, 40 + 4 * ks) for ks in range(8)]
def pv32(u): return [m32(160, 32 + 8 * u + ks, 8 + 4 * ks) for ks in range(8)]
def weave(a, b):
    out = []; na, nb = len(a), len(b); j = 0
    for i, x in enumerate(a):
        while j < nb and j * na <= i * nb: out.append(b[j]); j += 1
        out.append(x)
    return out + b[j:]
pre = "\n".join(f"    v_mov_b32 v{r}, 0x3f803f80" for r in range(252, 256)) + """
    s_mov_b32 m0, 0x8000
    s_lshl_b32 s60, s2, 17
    s_add_u32 s64, s40, s60
    s_addc_u32 s65, s41, 0
    s_add_u32 s64, s64, 0x4000000
    s_addc_u32 s65, s65, 0
    s_mov_b32 s66, 0x20000
    s_mov_b32 s67, 0x00020000
    s_mul_i32 s60, s2, 409600
    s_add_u32 s72, s40, s60
    s_addc_u32 s73, s41, 0
    s_add_u32 s72, s72, 0x8000000
    s_addc_u32 s73, s73, 0
    s_mov_b32 s74, 409600
    s_mov_b32 s75, 0x00020000
    s_add_u32 s76, s72, 0x8000000
    s_addc_u32 s77, s73, 0
    s_mov_b32 s78, 409600
    s_mov_b32 s79, 0x00020000
    s_mov_b32 s69, 0
    s_mov_b32 s70, 0
    s_mov_b32 s71, 0
"""
def emit(name, desc, mfs, items, scal, nunits, iters):
    body, ov = pack(mfs, items, scal)
    print(name, "gaps", len(mfs), "over cycles", ov)
    open(f"mbs8/{name}.s", "w").write(kernel(desc, body + "\n    s_barrier\n", nunits, iters=iters, pre=pre))
ONES = "v[252:255]"
for mem in (0, 1):
    g = ['dmaq', 'gsts', 'dmaq', 'gsts'] if mem else []
    sm = ['exp', 'exp', 'add', 'add', 'cvt'] * 32
    smn = ['exp', 'exp', 'cvt'] * 32
    epi = ['add'] * 24 + ['cvt'] * 8
    lds = weave(['rd128'] * 33, ['wr128'] * 8 + g)
    lds2 = weave(['rd128'] * 41, ['wr128'] * 8 + g)
    scal = ['wait'] * 20 + ['vmw']
    mA = sum([qk16(u) + pv16(u) for u in range(8)], [])
    emit(f"i_16_adds_m{mem}", "I all m16 adds", mA, weave(weave(sm, epi), lds), scal, 64, 50)
    mB = sum([qk16(u) + pv16(u) + [m16(176, 0, 8 + 4 * u, A=ONES)] for u in range(8)], [])
    emit(f"i_16_ones_m{mem}", "I all m16 ones", mB, weave(weave(smn, epi), lds), scal, 64, 50)
    mC = sum([qk32(u)[:4] + pv16(2 * u) + qk32(u)[4:] + pv16(2 * u + 1) for u in range(4)], [])
    emit(f"i_32_16_adds_m{mem}", "I QK32 PV16 adds", mC, weave(weave(sm, epi), lds2), scal, 64, 50)
    mC2 = sum([qk32(u)[:4] + pv16(2 * u) + [m16(176, 0, 8 + 8 * u, A=ONES)] + qk32(u)[4:] + pv16(2 * u + 1) + [m16(176, 0, 12 + 8 * u, A=ONES)] for u in range(4)], [])
    emit(f"i_32_16_ones_m{mem}", "I QK32 PV16 ones", mC2, weave(weave(smn, epi), lds2), scal, 64, 50)
    mD = sum([qk32(u) + pv32(u) for u in range(4)], [])
    emit(f"i_32_adds_m{mem}", "I all m32 adds", mD, weave(weave(sm, epi), lds), scal, 64, 50)
    def fqk(j): return [m16(8 + 4 * ((2 * j + h) % 6), 4 * h + ks, 0, B=f"a[{128 + 16 * j + 4 * ks}:{128 + 16 * j + 4 * ks + 3}]") for h in range(2) for ks in range(4)]
    def fpv(j): return [m16(128 + 4 * ((8 * j + db) % 30), 8 + db, 40 + 4 * j) for db in range(8)]
    gF = (['dmav', 'dmav'] + ['gldq', 'gsts']) if mem else []
    smF = ['exp', 'exp', 'add', 'add', 'cvt'] * 20
    smFn = ['exp', 'exp', 'cvt'] * 20
    epiF = ['add'] * 10 + ['cvt'] * 5
    ldsF = weave(weave(['rdtr'] * 16, ['rd128'] * 8), gF) if gF else weave(['rdtr'] * 16, ['rd128'] * 8)
    scF = ['wait'] * 10 + ['vmw']
    mF = sum([fqk(j) + fpv(j) for j in range(5)], [])
    emit(f"f_adds_m{mem}", "F adds (epi spread)", mF, weave(weave(smF, epiF), ldsF), scF, 40, 80)
    mFo = sum([fqk(j) + fpv(j) + [m16(248, 0, 40 + 4 * j, A=ONES)] for j in range(5)], [])
    emit(f"f_ones_m{mem}", "F ones (epi spread)", mFo, weave(weave(smFn, epiF), ldsF), scF, 40, 80)
    mFh = sum([fqk(j) + fpv(j) + ([m16(248, 0, 40 + 4 * j, A=ONES)] if j in (1, 3) else []) for j in range(5)], [])
    smFh = weave(smFn, ['add'] * 24)
    emit(f"f_half_m{mem}", "F 2/5 ones (epi spread)", mFh, weave(weave(smFh, epiF), ldsF), scF, 40, 80)
```

```python
from gen8 import *
os.makedirs("mbs9", exist_ok=True)
class F3(F2):
    def get(s, k):
        if k == 'bar': return "s_barrier"
        if k == 'wait0': return "s_waitcnt lgkmcnt(0)"
        return F2.get(s, k)
def single(name, desc, gaps, mf, n, iters=20, grid=64):
    f = F3(); out = []
    for i in range(n):
        out.append("    " + mf(i))
        for k in gaps[i % len(gaps)]:
            out.append("    " + f.get(k))
    open(f"mbs9/{name}.s", "w").write(kernel(desc, "\n".join(out), n, iters=iters, pre=pre, grid=grid))
M32 = mk(32, lambda i: i % 32, lambda i: i % 8, lambda i: (i // 8) % 2)
M16 = mk(16, lambda i: i % 32, lambda i: i % 8, lambda i: (i // 4) % 8)
single("m16_plain", "m16 exp", [['exp']], M16, 512, iters=5)
single("m16_bar32", "m16 exp, barrier every 32 (empty gap)", [['bar']] + [['exp']] * 31, M16, 512, iters=5)
single("m16_bar32e", "m16 exp, barrier every 32 (bar,exp)", [['bar', 'exp']] + [['exp']] * 31, M16, 512, iters=5)
single("m16_bar32f", "m16 exp, barrier every 32 (exp,bar)", [['exp', 'bar']] + [['exp']] * 31, M16, 512, iters=5)
single("m32_plain", "m32 exp exp", [['exp', 'exp']], M32, 256, iters=5)
single("m32_bar16", "m32, barrier every 16 (empty gap)", [['bar']] + [['exp', 'exp']] * 15, M32, 256, iters=5)
single("m32_bar16e", "m32, barrier every 16 (bar exp exp)", [['bar', 'exp', 'exp']] + [['exp', 'exp']] * 15, M32, 256, iters=5)
single("m16_loop32", "m16 exp loop of 32", [['exp']], M16, 32, iters=80)
single("m16_loop64", "m16 exp loop of 64", [['exp']], M16, 64, iters=40)
single("m16_loop32b", "m16 exp loop of 32, last gap empty", [['exp']] * 31 + [[]], M16, 32, iters=80)
single("m16_gst16", "m16 gst every 16 (empty others)", [['gst']] + [[]] * 15, M16, 128)
single("m16_dma16", "m16 dma+add every 16 (empty others)", [['dma', 'add']] + [[]] * 15, M16, 128)
single("m16_dma16e", "m16 dma+exp every 16 (empty others)", [['dma', 'exp']] + [[]] * 15, M16, 128)
single("m16_gld16", "m16 gld+add every 16 (empty others)", [['gld', 'add']] + [[]] * 15, M16, 128)
single("m16_rr", "m16 rd rd / exp", [['rd128', 'rd128'], ['exp'], ['exp'], ['exp']], M16, 128)
single("m16_tt", "m16 rdtr rdtr / exp", [['rdtr', 'rdtr'], ['exp']], M16, 128)
single("m16_wrd", "m16 wait rd add / exp", [['wait', 'rd128', 'add'], ['exp']], M16, 128)
single("m16_ss", "m16 salu salu add / exp", [['salu', 'salu', 'add'], ['exp']], M16, 128)
single("m16_ssa", "m16 salu salu add add/ exp", [['salu', 'salu', 'add', 'add'], ['exp']], M16, 128)
single("m16_es", "m16 exp salu", [['exp', 'salu']], M16, 128)
single("m16_ses", "m16 salu exp salu", [['salu', 'exp', 'salu']], M16, 128)
single("m16_er", "m16 exp rd / exp", [['exp', 'rd128'], ['exp']], M16, 128)
single("m16_ar", "m16 add rd / exp", [['add', 'rd128'], ['exp']], M16, 128)
```

```python
import sys
def kernel(desc, body, nmfma, iters=2000, grid=256, block=256, lds=65536, nfv=512, acc=256, pre=""):
    s = []
    s.append(f"; {desc}")
    s.append(f"; @launch grid=({grid},1,1) block=({block},1,1) lds={lds}")
    s.append('''.amdgcn_target "amdgcn-amd-amdhsa--gfx950"
.text
.globl mb_kernel
.p2align 8
.type mb_kernel,@function
mb_kernel:
    s_load_dwordx2 s[4:5], s[0:1], 0
    s_load_dwordx2 s[6:7], s[0:1], 32
    s_load_dwordx2 s[40:41], s[0:1], 40
    s_waitcnt lgkmcnt(0)
    s_mov_b32 s8, s4
    s_mov_b32 s9, s5
    s_mov_b32 s10, 0x800000
    s_mov_b32 s11, 0x00020000
    s_mov_b32 s12, s6
    s_mov_b32 s13, s7
    s_mov_b32 s14, 256
    s_mov_b32 s15, 0x00020000
    s_mov_b32 s44, s40
    s_mov_b32 s45, s41
    s_mov_b32 s46, 0x4000000
    s_mov_b32 s47, 0x00020000
    v_lshlrev_b32 v1, 4, v0
    v_and_b32 v2, 63, v0
    v_lshlrev_b32 v2, 4, v2       ; lane*16
    v_lshrrev_b32 v3, 6, v0
    v_lshlrev_b32 v3, 13, v3      ; wave*8192
    v_lshrrev_b32 v5, 1, v2
    v_add_u32 v5, v5, v3          ; lds addr for b64
    v_add_u32 v2, v2, v3          ; lds addr
''')
    nv = min(acc, 128)
    for r in range(8, nv, 4):
        s.append(f"    s_mov_b32 s16, {r*4096}")
        s.append(f"    buffer_load_dwordx4 v[{r}:{r+3}], v1, s[8:11], s16 offen")
    s.append("    s_waitcnt vmcnt(0)")
    for r in range(nv, acc):
        s.append(f"    v_mov_b32 v{r}, 0")
    for r in range(0, nfv-acc):
        s.append(f"    v_accvgpr_write_b32 a{r}, v{8 + (r % 64)}")
    for i in range(8):
        s.append(f"    ds_write_b128 v2, v[{8+4*i}:{11+4*i}] offset:{i*1024}")
    s.append(pre)
    s.append(f'''    s_waitcnt lgkmcnt(0)
    s_barrier
    s_mov_b32 s30, {iters}
    s_memtime s[20:21]
    s_memrealtime s[22:23]
    s_waitcnt lgkmcnt(0)
.p2align 6
L_loop:''')
    s.append(body)
    s.append(f'''    s_sub_u32 s30, s30, 1
    s_cmp_lg_u32 s30, 0
    s_cbranch_scc1 L_loop
    s_memtime s[24:25]
    s_memrealtime s[26:27]
    s_waitcnt lgkmcnt(0) vmcnt(0)
    s_sub_u32 s24, s24, s20
    s_sub_u32 s26, s26, s22
    v_and_b32 v8, 63, v0
    v_cmp_eq_u32 vcc, 0, v8
    s_and_saveexec_b64 s[32:33], vcc
    v_lshrrev_b32 v8, 6, v0
    s_lshl_b32 s34, s2, 4
    v_add_u32 v8, s34, v8
    v_lshlrev_b32 v8, 4, v8
    v_mov_b32 v4, s24
    v_mov_b32 v5, s26
    v_mov_b32 v6, s22
    v_mov_b32 v7, 0
    s_mov_b32 s35, 0x2000000
    buffer_store_dwordx4 v[4:7], v8, s[44:47], s35 offen
    s_waitcnt vmcnt(0)
    s_mov_b64 exec, s[32:33]
    s_cmp_lg_u32 s2, 0
    s_cbranch_scc1 L_end
    v_cmp_eq_u32 vcc, 0, v0
    s_and_saveexec_b64 s[32:33], vcc
    s_cbranch_execz L_end
    v_mov_b32 v4, s24
    v_mov_b32 v5, s26
    v_mov_b32 v6, {nmfma*iters}
    v_cvt_f32_u32 v8, v4
    v_cvt_f32_u32 v9, v6
    v_rcp_f32 v9, v9
    s_nop 1
    v_mul_f32 v8, v8, v9
    v_mul_f32 v8, 0x42c80000, v8
    v_cvt_u32_f32 v7, v8
    v_cvt_f32_u32 v8, v4
    v_cvt_f32_u32 v9, v5
    v_rcp_f32 v9, v9
    s_nop 1
    v_mul_f32 v8, v8, v9
    v_mul_f32 v8, 0x42c80000, v8
    v_cvt_u32_f32 v6, v8          ; MHz
    v_mov_b32 v3, 0
    buffer_store_dwordx4 v[4:7], v3, s[12:15], 0 offen
    s_waitcnt vmcnt(0)
L_end:
    s_endpgm
.section .rodata,"a"
.p2align 6
.amdhsa_kernel mb_kernel
  .amdhsa_next_free_vgpr {nfv}
  .amdhsa_next_free_sgpr 102
  .amdhsa_accum_offset {acc}
  .amdhsa_group_segment_fixed_size 0
  .amdhsa_kernarg_size 48
  .amdhsa_user_sgpr_count 2
  .amdhsa_user_sgpr_kernarg_segment_ptr 1
  .amdhsa_system_sgpr_workgroup_id_x 1
.end_amdhsa_kernel
''')
    return "\n".join(s)

class F:
    def __init__(s): s.c = {}; s.n = 0
    def get(s, k):
        s.c[k] = s.c.get(k, 0) + 1
        s.i = s.c[k]; s.n += 1
        d = 96 + (s.n % 15); a = 72 + ((s.i * 3 + len(k)) % 7)
        if k == 'exp': return f"v_exp_f32 v{d}, v{a}"
        if k == 'add': return f"v_add_f32 v{d}, v{a}, v{a+8}"
        if k == 'addc': return f"v_add_f32 v112, v{a}, v112"
        if k == 'fma': return f"v_fma_f32 v{d}, v{a}, v{a+8}, v{a+1}"
        if k == 'max3': return f"v_max3_f32 v{d}, v{a}, v{a+8}, v{a+1}"
        if k == 'cvt': return f"v_cvt_pk_bf16_f32 v{d}, v{a}, v{a+8}"
        if k == 'pkadd':
            d &= ~1; a &= ~1
            return f"v_pk_add_f32 v[{d}:{d+1}], v[{a}:{a+1}], v[{a+8}:{a+9}]"
        if k == 'pkmul':
            d &= ~1; a &= ~1
            return f"v_pk_mul_f32 v[{d}:{d+1}], v[{a}:{a+1}], v[{a+8}:{a+9}]"
        if k == 'dot2': return f"v_dot2_f32_bf16 v{d}, v{a}, v{a+8}, v{d}"
        if k == 'nop': return "s_nop 0"
        if k == 'salu': return "s_add_u32 s50, s51, s52"
        if k == 'wait': return "s_waitcnt lgkmcnt(15)"
        if k == 'rd128':
            j = s.i % 4
            return f"ds_read_b128 v[{112+4*j}:{115+4*j}], v2 offset:{(s.i%8)*1024}"
        if k == 'rdtr':
            j = s.i % 8
            return f"ds_read_b64_tr_b16 v[{112+2*j}:{113+2*j}], v5 offset:{(s.i%16)*512}"
        if k == 'wr128':
            return f"ds_write_b128 v2, v[{72+4*(s.i%4)}:{75+4*(s.i%4)}] offset:{(s.i%8)*1024}"
        if k == 'dma':
            return f"buffer_load_dwordx4 v1, s[8:11], 0 offen lds"
        if k == 'gld':
            return f"buffer_load_dwordx4 v[112:115], v1, s[8:11], 0 offen"
        if k == 'gst':
            return f"buffer_store_dwordx4 v[72:75], v1, s[44:47], 0 offen"
        if k == 'mov': return f"v_mov_b32 v{d}, v{a}"
        raise ValueError(k)

def mfma32(i, nacc=4, agpr=False, accbase=128):
    c = accbase + 16 * (i % nacc)
    a = 8 + 4 * (i % 8); b = 40 + 4 * ((i // 2) % 8)
    A = f"a[{4*(i%32)}:{4*(i%32)+3}]" if agpr else f"v[{a}:{a+3}]"
    return f"v_mfma_f32_32x32x16_bf16 v[{c}:{c+15}], {A}, v[{b}:{b+3}], v[{c}:{c+15}]"
def mfma16(i, nacc=8, agpr=False, accbase=128):
    c = accbase + 4 * (i % nacc)
    a = 8 + 4 * (i % 8); b = 40 + 4 * ((i // 2) % 8)
    A = f"a[{4*(i%32)}:{4*(i%32)+3}]" if agpr else f"v[{a}:{a+3}]"
    return f"v_mfma_f32_16x16x32_bf16 v[{c}:{c+3}], {A}, v[{b}:{b+3}], v[{c}:{c+3}]"

def body(gaps, mf=mfma32, n=16, **kw):
    f = F(); out = []
    for i in range(n):
        if mf: out.append("    " + mf(i, **kw))
        for k in gaps[i % len(gaps)]:
            out.append("    " + f.get(k))
    return "\n".join(out)

if __name__ == "__main__":
    import os
    os.makedirs("mbs", exist_ok=True)
    T = {}
    def add(name, desc, gaps, mf=mfma32, n=16, waves=1, **kw):
        kk = {}
        if waves == 2: kk = dict(block=512, nfv=256, acc=192)
        kw2 = {k: v for k, v in kw.items() if k in ('nacc', 'agpr')}
        kk.update({k: v for k, v in kw.items() if k in ('grid', 'iters', 'pre')})
        open(f"mbs/{name}.s", "w").write(kernel(desc, body(gaps, mf, n, **kw2), n, **kk))
    for w in (1, 2):
        add(f"a{w}_mfma32", f"w{w} bare mfma32", [[]], waves=w)
        add(f"a{w}_mfma32_1acc", f"w{w} bare mfma32 1acc", [[]], waves=w, nacc=1)
        add(f"a{w}_mfma16", f"w{w} bare mfma16", [[]], mf=mfma16, waves=w)
        for k in ('add', 'fma', 'exp', 'cvt', 'pkadd', 'max3', 'dot2', 'nop', 'salu', 'mov'):
            add(f"b{w}_{k}", f"w{w} no mfma, {k} (per instr)", [[k]], mf=None, n=64, waves=w)
        for nn in (4, 5, 6, 7, 8):
            add(f"c{w}_add{nn}", f"w{w} mfma32 + {nn} add", [['add'] * nn], waves=w)
        for nn in (2, 3, 4):
            add(f"c{w}_exp{nn}", f"w{w} mfma32 + {nn} exp", [['exp'] * nn], waves=w)
        add(f"d{w}_mix1", f"w{w} mfma32 + exp add cvt rd128", [['exp', 'add', 'cvt', 'rd128']], waves=w)
        add(f"d{w}_mix2", f"w{w} mfma32 + exp add cvt rd128 wait", [['exp', 'add', 'cvt', 'rd128', 'wait']], waves=w)
        add(f"d{w}_mix3", f"w{w} mfma32 + exp add add cvt rd128 wait", [['exp', 'add', 'add', 'cvt', 'rd128', 'wait']], waves=w)
        add(f"d{w}_pk", f"w{w} mfma32 + exp pkadd", [['exp', 'pkadd']], waves=w)
        add(f"d{w}_pk2", f"w{w} mfma32 + exp exp pkadd", [['exp', 'exp', 'pkadd']], waves=w)
        add(f"e{w}_m16_a1", f"w{w} mfma16 + 1 add", [['add']], mf=mfma16, waves=w)
        add(f"e{w}_m16_a2", f"w{w} mfma16 + 2 add", [['add', 'add']], mf=mfma16, waves=w)
        add(f"e{w}_m16_a3", f"w{w} mfma16 + 3 add", [['add', 'add', 'add']], mf=mfma16, waves=w)
        add(f"e{w}_m16_e1", f"w{w} mfma16 + exp | add cvt", [['exp'], ['add', 'cvt']], mf=mfma16, waves=w)
        add(f"e{w}_m16_e2", f"w{w} mfma16 + exp | add cvt rd", [['exp'], ['add', 'cvt', 'rd128']], mf=mfma16, waves=w)
```

```python
from gen9 import *
os.makedirs("mbs11", exist_ok=True)
def SM(i): return f"v_smfmac_f32_16x16x64_bf16 v[248:251], a[0:3], v[{40+8*(i%4)}:{47+8*(i%4)}], v72"
def single2(name, desc, gaps, mf, n, iters=20, grid=64):
    f = F3(); out = []
    for i in range(n):
        out.append("    " + mf(i))
        for k in gaps[i % len(gaps)]:
            out.append("    " + (f.get(k) if not k.startswith('v_') else k))
    open(f"mbs11/{name}.s", "w").write(kernel(desc, "\n".join(out), n, iters=iters, pre=pre, grid=grid))
single2("sm_bare", "smfmac bare", [[]], SM, 128)
single2("sm_a", "smfmac + add", [['add']], SM, 128)
single2("sm_e", "smfmac + exp", [['exp']], SM, 128)
single2("sm_aa", "smfmac + add add", [['add', 'add']], SM, 128)
mix = lambda i: SM(i // 8) if i % 8 == 7 else M16(i)
single2("mix_e", "7 mfma + 1 smfmac, exp each", [['exp']], mix, 128)
single2("mix_0", "7 mfma + 1 smfmac, bare", [[]], mix, 128)
single2("m16_mov64", "m16 + mov_b64 x2 / exp", [['v_mov_b64 v[96:97], 0', 'v_mov_b64 v[98:99], 0'], ['exp']], M16, 128)
single2("m16_mov64_1", "m16 + mov_b64 x1 / exp", [['v_mov_b64 v[96:97], 0'], ['exp']], M16, 128)
single2("m16_pkmul1", "m16 + pkmul / exp", [['pkmul'], ['exp']], M16, 128)
single2("m16_dot2", "m16 + dot2 / exp", [['dot2'], ['exp']], M16, 128)
single2("m16_burst_pk", "m16 + [a a a a pk pk pk pk] / 7 bare", [['add'] * 4 + ['pkmul'] * 4] + [[]] * 7, M16, 128)
single2("m16_burst_a", "m16 + [a x8] / 7 bare", [['add'] * 8] + [[]] * 7, M16, 128)
single2("m16_w64", "m16 + wr64 every 8", [['v_nop']] * 0 + [['w64']] + [['exp']] * 7, M16, 128) if False else None
```
